```python
import torch

def _softmax(x, axis=-1):
    return torch.softmax(x, dim=axis)
def _gelu(x):
    return torch.nn.functional.gelu(x, approximate="tanh")
def _silu(x):
    return torch.nn.functional.silu(x)
def _sigmoid(x):
    return torch.sigmoid(x)
def _layernorm(x, axis=-1, eps=1e-5):
    m = x.mean(dim=axis, keepdim=True)
    v = x.var(dim=axis, keepdim=True, unbiased=False)
    return (x - m) / torch.sqrt(v + eps)
def _scatter_add(tgt, idx, src, axis=0):
    return tgt.clone().index_add_(axis, idx, src)
def _segment_sum(src, seg, n):
    out = torch.zeros((n,) + src.shape[1:], dtype=src.dtype)
    return out.index_add_(0, seg, src)
def _pad(x, pw):
    flat = tuple(v for pair in reversed(pw) for v in pair)
    return torch.nn.functional.pad(x, flat)

kernel_name = 'standalone__mha_block_cached__near_ridge'

def setup_inputs():

    _w = (lambda a: (lambda t: t.to(torch.bfloat16) if t.is_floating_point() else t)(torch.as_tensor(a)))
    B, Sq, D = 32, 144, 512
    H, Sk, Dh = 32, 512, 128
    return {
        "x": _w((lambda *s: torch.randn(*s, dtype=torch.bfloat16) * 0.8)(B, Sq, D)),
        "k_cache": _w((lambda *s: torch.randn(*s, dtype=torch.bfloat16) * 0.8)(B, H, Sk, Dh)),
        "v_cache": _w((lambda *s: torch.randn(*s, dtype=torch.bfloat16) * 0.05)(B, H, Sk, Dh)),
        "wq": _w((lambda *s: torch.randn(*s, dtype=torch.bfloat16) * 0.8)(D, H * Dh) * (D ** -0.5)),
        "wo": _w((lambda *s: torch.randn(*s, dtype=torch.bfloat16) * 0.05)(H * Dh, D) * ((H * Dh) ** -0.5)),
    }

def reference(x, k_cache, v_cache, wq, wo):
    B, Sq, D = x.shape
    H, Dh = 32, 128
    q = (lambda x, *d: x.permute(*d))((x @ wq).reshape(B, Sq, H, Dh), 0, 2, 1, 3)
    scores = torch.einsum("bhqd,bhkd->bhqk", q, k_cache) * (Dh ** -0.5)
    p = _softmax(scores, axis=-1)
    o = torch.einsum("bhqk,bhkd->bhqd", p, v_cache)
    return (lambda x, *d: x.permute(*d))(o, 0, 2, 1, 3).reshape(B, Sq, H * Dh) @ wo
```

```python
import sys

NAME = "standalone__mha_block_cached__near_ridge"
OUT = "cdna_kernels/%s.s" % NAME

SCALE_LOG2E = 0.08838834764831845 * 1.4426950408889634


def f32bits(x):
    import struct
    return struct.unpack("<I", struct.pack("<f", x))[0]


class Asm:
    def __init__(self):
        self.L = []

    def e(self, s):
        self.L.append("    " + s)

    def label(self, s):
        self.L.append(s + ":")

    def c(self, s):
        self.L.append("    ; " + s)

    def nop(self, n):
        while n > 0:
            k = min(n, 16)
            self.e("s_nop %d" % (k - 1))
            n -= k

    def text(self):
        return "\n".join(self.L) + "\n"


def vr(b, n=4):
    return "v[%d:%d]" % (b, b + n - 1)


def gen_attn(a):
    kn = "attn_kernel"
    a.L.append(".globl %s" % kn)
    a.L.append(".p2align 8")
    a.L.append(".type %s,@function" % kn)
    a.label(kn)
    e = a.e
    e("s_cmp_ge_u32 s2, 1024")
    e("s_cbranch_scc1 attn_done")
    e("s_load_dwordx4 s[4:7], s[0:1], 0")
    e("s_load_dwordx4 s[8:11], s[0:1], 16")
    e("s_load_dwordx2 s[12:13], s[0:1], 56")
    e("v_and_b32 v1, 63, v0")
    e("v_lshrrev_b32 v9, 6, v0")
    e("v_and_b32 v2, 15, v1")
    e("v_lshrrev_b32 v3, 4, v1")
    e("s_nop 0")
    e("v_readfirstlane_b32 s3, v9")
    e("s_lshr_b32 s14, s2, 5")
    e("s_and_b32 s15, s2, 31")
    e("s_waitcnt lgkmcnt(0)")
    e("s_lshl_b32 s20, s2, 17")
    e("s_add_u32 s16, s6, s20")
    e("s_addc_u32 s17, s7, 0")
    e("s_and_b32 s17, s17, 0xffff")
    e("s_mov_b32 s18, 0x20000")
    e("s_mov_b32 s19, 0x20000")
    e("s_lshl_b32 s24, s2, 17")
    e("s_add_u32 s20, s8, s24")
    e("s_addc_u32 s21, s9, 0")
    e("s_and_b32 s21, s21, 0xffff")
    e("s_mov_b32 s22, 0x20000")
    e("s_mov_b32 s23, 0x20000")
    e("s_lshl_b32 s28, s15, 8")
    e("s_add_u32 s24, s10, s28")
    e("s_addc_u32 s25, s11, 0")
    e("s_and_b32 s25, s25, 0xffff")
    e("s_sub_u32 s26, 0x400000, s28")
    e("s_mov_b32 s27, 0x20000")
    e("s_mul_i32 s32, s14, 147456")
    e("s_add_u32 s28, s4, s32")
    e("s_addc_u32 s29, s5, 0")
    e("s_and_b32 s29, s29, 0xffff")
    e("s_mov_b32 s30, 147456")
    e("s_mov_b32 s31, 0x20000")
    e("s_mul_i32 s36, s14, 1179648")
    e("s_lshl_b32 s37, s15, 8")
    e("s_add_u32 s36, s36, s37")
    e("s_add_u32 s32, s12, s36")
    e("s_addc_u32 s33, s13, 0")
    e("s_and_b32 s33, s33, 0xffff")
    e("s_sub_u32 s34, 1179648, s37")
    e("s_mov_b32 s35, 0x20000")
    e("s_lshl_b32 s36, s3, 10")
    e("s_sub_u32 s37, 2, s3")
    e("s_lshl_b32 s37, s37, 10")
    e("v_lshlrev_b32 v4, 4, v1")
    e("v_lshlrev_b32 v5, 13, v3")
    e("v_lshl_add_u32 v5, v2, 4, v5")
    e("v_lshlrev_b32 v6, 8, v2")
    e("v_lshl_add_u32 v6, v3, 4, v6")
    e("v_lshrrev_b32 v9, 2, v2")
    e("v_lshl_add_u32 v9, v3, 3, v9")
    e("v_lshlrev_b32 v7, 8, v9")
    e("v_and_b32 v9, 3, v2")
    e("v_lshl_add_u32 v7, v9, 3, v7")
    e("v_lshrrev_b32 v9, 2, v2")
    e("v_lshl_add_u32 v9, v3, 2, v9")
    e("v_lshlrev_b32 v8, 8, v9")
    e("v_and_b32 v9, 3, v2")
    e("v_lshl_add_u32 v8, v9, 3, v8")
    e("v_add_u32 v8, 0x4000, v8")
    e("s_mul_i32 s38, s3, 48")
    e("v_add_u32 v10, s38, v2")
    e("v_lshlrev_b32 v10, 10, v10")
    e("v_lshl_add_u32 v10, v3, 4, v10")
    e("v_add_u32 v11, s38, v2")
    e("v_lshlrev_b32 v11, 13, v11")
    e("v_lshl_add_u32 v11, v3, 3, v11")
    e("s_lshl_b32 s39, s3, 12")
    e("s_add_u32 s39, s39, 0x10000")
    e("v_lshlrev_b32 v12, 8, v2")
    e("v_lshl_add_u32 v12, v3, 3, v12")
    e("v_add_u32 v12, s39, v12")
    e("v_lshlrev_b32 v13, 8, v2")
    e("v_lshl_add_u32 v13, v3, 4, v13")
    e("v_add_u32 v13, s39, v13")

    QF = 16
    OA = 64
    SA = 160
    PF = 208
    AF = 232
    MR, LR = 248, 251
    T0, T1 = 254, 255

    def dma_wq_slot(it, slot):
        a.c("DMA wq iter %d -> slot %d" % (it, slot))
        for j in range(11):
            c_last = (j == 10)
            if c_last:
                e("s_cmp_eq_u32 s3, 2")
                e("s_cbranch_scc1 wq_skip_%d" % it)
            e("s_add_u32 m0, s36, %d" % (slot * 32768 + 3072 * j))
            e("s_lshl_b32 s40, s3, 15")
            e("s_add_u32 s40, s40, %d" % ((it * 128 + 12 * j) * 8192))
            e("buffer_load_dwordx4 v5, s[24:27], s40 offen lds")
            if c_last:
                a.label("wq_skip_%d" % it)

    def dma_kv(slot_sreg, toff_sreg, tag):
        a.c("DMA K/V tile")
        for j in range(6):
            last = (j == 5)
            if last:
                e("s_cmp_lg_u32 s3, 0")
                e("s_cbranch_scc1 kskip_%s" % tag)
            e("s_add_u32 s40, s36, %d" % (3072 * j))
            e("s_add_u32 m0, s40, %s" % slot_sreg)
            e("s_add_u32 s40, s40, %s" % toff_sreg)
            e("buffer_load_dwordx4 v4, s[16:19], s40 offen lds")
            if last:
                a.label("kskip_%s" % tag)
        for j in range(6):
            last = (j == 5)
            if last:
                e("s_cmp_lg_u32 s3, 2")
                e("s_cbranch_scc1 vskip_%s" % tag)
            e("s_add_u32 s40, s37, %d" % (3072 * j))
            e("s_add_u32 m0, s40, %s" % slot_sreg)
            e("s_add_u32 m0, m0, 0x4000")
            e("s_add_u32 s40, s40, %s" % toff_sreg)
            e("buffer_load_dwordx4 v4, s[20:23], s40 offen lds")
            if last:
                a.label("vskip_%s" % tag)

    for i in range(96):
        e("v_mov_b32 v%d, 0" % (OA + i))

    dma_wq_slot(0, 0)
    for it in range(4):
        slot = it & 1
        a.c("==== Q-proj iteration %d" % it)
        for qt in range(3):
            e("s_mov_b32 s41, %d" % (qt * 16 * 1024))
            for ks in range(4):
                e("buffer_load_dwordx4 %s, v10, s[28:31], s41 offen offset:%d" %
                  (vr(SA + (qt * 4 + ks) * 4), (it * 4 + ks) * 64))
        e("s_waitcnt vmcnt(0)")
        e("s_barrier")
        if it < 3:
            dma_wq_slot(it + 1, slot ^ 1)
        else:
            e("s_mov_b32 s42, %d" % ((slot ^ 1) * 32768))
            e("s_mov_b32 s43, 0")
            dma_kv("s42", "s43", "pre")
        for ks in range(4):
            for dt in range(8):
                ab = AF + (dt & 3) * 4
                off = slot * 32768 + ks * 32 * 256 + dt * 32
                e("ds_read_b64_tr_b16 %s, v7 offset:%d" % (vr(ab, 2), off))
                e("ds_read_b64_tr_b16 %s, v7 offset:%d" % (vr(ab + 2, 2), off + 1024))
                e("s_waitcnt lgkmcnt(0)")
                for qt in range(3):
                    acc = OA + (dt * 3 + qt) * 4
                    e("v_mfma_f32_16x16x32_bf16 %s, %s, %s, %s" %
                      (vr(acc), vr(ab), vr(SA + (qt * 4 + ks) * 4), vr(acc)))
    a.nop(10)
    for qt in range(3):
        for dt in range(8):
            acc = OA + (dt * 3 + qt) * 4
            e("v_cvt_pk_bf16_f32 v%d, v%d, v%d" % (T0, acc, acc + 1))
            e("v_cvt_pk_bf16_f32 v%d, v%d, v%d" % (T1, acc + 2, acc + 3))
            e("ds_write_b64 v12, v[%d:%d] offset:%d" % (T0, T1, dt * 32))
        e("s_waitcnt lgkmcnt(0)")
        for ks in range(4):
            e("ds_read_b128 %s, v13 offset:%d" % (vr(QF + (qt * 4 + ks) * 4), ks * 64))
        e("s_waitcnt lgkmcnt(0)")
    for i in range(96):
        e("v_mov_b32 v%d, 0" % (OA + i))
    for qt in range(3):
        e("v_mov_b32 v%d, 0xf149f2ca" % (MR + qt))
        e("v_mov_b32 v%d, 0" % (LR + qt))
    e("s_mov_b32 s44, 0")
    e("s_mov_b32 s45, 0")
    e("s_mov_b32 s46, 0x%x" % f32bits(SCALE_LOG2E))
    a.label("attn_loop")
    e("s_waitcnt vmcnt(0)")
    e("s_barrier")
    e("s_cmp_ge_u32 s44, 7")
    e("s_cbranch_scc1 attn_noload")
    e("s_xor_b32 s42, s45, 0x8000")
    e("s_add_u32 s43, s44, 1")
    e("s_lshl_b32 s43, s43, 14")
    dma_kv("s42", "s43", "loop")
    a.label("attn_noload")
    for kt in range(4):
        for ks in range(4):
            e("ds_read_b128 %s, v6 offset:%d" % (vr(AF + ks * 4), kt * 4096 + ks * 64))
        e("s_waitcnt lgkmcnt(0)")
        for ks in range(4):
            for qt in range(3):
                acc = SA + (kt * 3 + qt) * 4
                src_c = vr(acc) if ks else "0"
                e("v_mfma_f32_16x16x32_bf16 %s, %s, %s, %s" %
                  (vr(acc), vr(AF + ks * 4), vr(QF + (qt * 4 + ks) * 4), src_c))
    a.nop(10)
    for qt in range(3):
        S = [SA + (kt * 3 + qt) * 4 + r for kt in range(4) for r in range(4)]
        e("v_max3_f32 v%d, v%d, v%d, v%d" % (T0, S[0], S[1], S[2]))
        for i in range(3, 15, 2):
            e("v_max3_f32 v%d, v%d, v%d, v%d" % (T0, T0, S[i], S[i + 1]))
        e("v_max_f32 v%d, v%d, v%d" % (T0, T0, S[15]))
        e("v_mov_b32 v%d, v%d" % (T1, T0))
        a.nop(2)
        e("v_permlane16_swap_b32 v%d, v%d" % (T0, T1))
        a.nop(2)
        e("v_max_f32 v%d, v%d, v%d" % (T0, T0, T1))
        e("v_mov_b32 v%d, v%d" % (T1, T0))
        a.nop(2)
        e("v_permlane32_swap_b32 v%d, v%d" % (T0, T1))
        a.nop(2)
        e("v_max_f32 v%d, v%d, v%d" % (T0, T0, T1))
        e("v_max_f32 v%d, v%d, v%d" % (T0, T0, MR + qt))
        e("v_sub_f32 v%d, v%d, v%d" % (T1, MR + qt, T0))
        e("v_mul_f32 v%d, s46, v%d" % (T1, T1))
        e("v_exp_f32 v%d, v%d" % (T1, T1))
        e("v_mov_b32 v%d, v%d" % (MR + qt, T0))
        e("v_mul_f32 v%d, s46, v%d" % (T0, T0))
        e("v_sub_f32 v%d, 0, v%d" % (T0, T0))
        for s in S:
            e("v_fma_f32 v%d, v%d, s46, v%d" % (s, s, T0))
        for s in S:
            e("v_exp_f32 v%d, v%d" % (s, s))
        e("v_mul_f32 v%d, v%d, v%d" % (LR + qt, LR + qt, T1))
        for s in S:
            e("v_add_f32 v%d, v%d, v%d" % (LR + qt, LR + qt, s))
        for dt in range(8):
            o = OA + (dt * 3 + qt) * 4
            for r in range(4):
                e("v_mul_f32 v%d, v%d, v%d" % (o + r, o + r, T1))
        for kb in range(2):
            p = PF + (kb * 3 + qt) * 4
            for h in range(2):
                s0 = SA + ((kb * 2 + h) * 3 + qt) * 4
                e("v_cvt_pk_bf16_f32 v%d, v%d, v%d" % (p + 2 * h, s0, s0 + 1))
                e("v_cvt_pk_bf16_f32 v%d, v%d, v%d" % (p + 2 * h + 1, s0 + 2, s0 + 3))
    a.nop(4)
    for kb in range(2):
        for dt in range(8):
            ab = AF + (dt & 3) * 4
            off = kb * 32 * 256 + dt * 32
            e("ds_read_b64_tr_b16 %s, v8 offset:%d" % (vr(ab, 2), off))
            e("ds_read_b64_tr_b16 %s, v8 offset:%d" % (vr(ab + 2, 2), off + 16 * 256))
            e("s_waitcnt lgkmcnt(0)")
            for qt in range(3):
                acc = OA + (dt * 3 + qt) * 4
                e("v_mfma_f32_16x16x32_bf16 %s, %s, %s, %s" %
                  (vr(acc), vr(ab), vr(PF + (kb * 3 + qt) * 4), vr(acc)))
    e("s_xor_b32 s45, s45, 0x8000")
    e("v_xor_b32 v6, 0x8000, v6")
    e("v_xor_b32 v8, 0x8000, v8")
    e("s_add_u32 s44, s44, 1")
    e("s_cmp_lt_u32 s44, 8")
    a.nop(8)
    e("s_cbranch_scc1 attn_loop")
    a.nop(8)
    for qt in range(3):
        e("v_mov_b32 v%d, v%d" % (T0, LR + qt))
        e("v_mov_b32 v%d, v%d" % (T1, T0))
        a.nop(2)
        e("v_permlane16_swap_b32 v%d, v%d" % (T0, T1))
        a.nop(2)
        e("v_add_f32 v%d, v%d, v%d" % (T0, T0, T1))
        e("v_mov_b32 v%d, v%d" % (T1, T0))
        a.nop(2)
        e("v_permlane32_swap_b32 v%d, v%d" % (T0, T1))
        a.nop(2)
        e("v_add_f32 v%d, v%d, v%d" % (T0, T0, T1))
        e("v_rcp_f32 v%d, v%d" % (T0, T0))
        e("s_mov_b32 s41, %d" % (qt * 16 * 8192))
        a.nop(1)
        for dt in range(8):
            o = OA + (dt * 3 + qt) * 4
            for r in range(4):
                e("v_mul_f32 v%d, v%d, v%d" % (o + r, o + r, T0))
            e("v_cvt_pk_bf16_f32 v%d, v%d, v%d" % (o, o, o + 1))
            e("v_cvt_pk_bf16_f32 v%d, v%d, v%d" % (o + 1, o + 2, o + 3))
            e("buffer_store_dwordx2 v[%d:%d], v11, s[32:35], s41 offen offset:%d" % (o, o + 1, dt * 32))
    e("s_waitcnt vmcnt(0)")
    a.label("attn_done")
    e("s_endpgm")


def gen_oproj(a):
    kn = "oproj_kernel"
    a.L.append(".globl %s" % kn)
    a.L.append(".p2align 8")
    a.L.append(".type %s,@function" % kn)
    a.label(kn)
    e = a.e
    e("s_cmp_ge_u32 s2, 256")
    e("s_cbranch_scc1 oproj_done")
    e("s_load_dwordx4 s[4:7], s[0:1], 32")
    e("s_load_dwordx2 s[8:9], s[0:1], 56")
    e("v_and_b32 v1, 63, v0")
    e("v_lshrrev_b32 v9, 6, v0")
    e("v_and_b32 v2, 15, v1")
    e("v_lshrrev_b32 v3, 4, v1")
    e("s_nop 0")
    e("v_readfirstlane_b32 s3, v9")
    e("s_and_b32 s10, s2, 7")
    e("s_lshr_b32 s11, s2, 3")
    e("s_lshr_b32 s12, s11, 3")
    e("s_lshl_b32 s13, s10, 2")
    e("s_add_u32 s12, s12, s13")
    e("s_and_b32 s13, s11, 7")
    e("s_waitcnt lgkmcnt(0)")
    e("s_mul_i32 s14, s12, 1179648")
    e("s_add_u32 s16, s8, s14")
    e("s_addc_u32 s17, s9, 0")
    e("s_and_b32 s17, s17, 0xffff")
    e("s_mov_b32 s18, 1179648")
    e("s_mov_b32 s19, 0x20000")
    e("s_lshl_b32 s14, s13, 7")
    e("s_add_u32 s20, s4, s14")
    e("s_addc_u32 s21, s5, 0")
    e("s_and_b32 s21, s21, 0xffff")
    e("s_sub_u32 s22, 0x400000, s14")
    e("s_mov_b32 s23, 0x20000")
    e("s_mul_i32 s15, s12, 147456")
    e("s_add_u32 s15, s15, s14")
    e("s_add_u32 s24, s6, s15")
    e("s_addc_u32 s25, s7, 0")
    e("s_and_b32 s25, s25, 0xffff")
    e("s_sub_u32 s26, 147456, s14")
    e("s_mov_b32 s27, 0x20000")
    e("v_lshrrev_b32 v9, 3, v1")
    e("v_and_b32 v10, 7, v1")
    e("v_lshlrev_b32 v4, 13, v9")
    e("v_lshl_add_u32 v4, v10, 4, v4")
    e("v_lshlrev_b32 v5, 10, v9")
    e("v_lshl_add_u32 v5, v10, 4, v5")
    e("s_lshr_b32 s28, s3, 1")
    e("s_and_b32 s29, s3, 1")
    e("s_mul_i32 s30, s28, 80*128")
    e("v_lshlrev_b32 v6, 7, v2")
    e("v_lshl_add_u32 v6, v3, 4, v6")
    e("v_add_u32 v6, s30, v6")
    e("v_lshrrev_b32 v9, 2, v2")
    e("v_lshl_add_u32 v9, v3, 3, v9")
    e("v_lshlrev_b32 v7, 7, v9")
    e("v_and_b32 v9, 3, v2")
    e("v_lshl_add_u32 v7, v9, 3, v7")
    e("s_lshl_b32 s30, s29, 6")
    e("s_add_u32 s30, s30, 18432")
    e("v_add_u32 v7, s30, v7")
    e("s_mul_i32 s30, s28, 80")
    e("v_add_u32 v8, s30, v2")
    e("v_lshlrev_b32 v8, 10, v8")
    e("v_lshl_add_u32 v8, v3, 3, v8")
    e("s_lshl_b32 s30, s29, 6")
    e("v_add_u32 v8, s30, v8")

    ACC = 16
    BF = 56
    AFR = 76
    SLOT = 26624
    NS = 4

    for i in range(40):
        e("v_mov_b32 v%d, 0" % (ACC + i))

    def dma(slot_s, koff_s, tag):
        e("s_lshl_b32 s34, s3, 10")
        e("s_lshl_b32 s35, s3, 16")
        for j in range(5):
            if j == 4:
                e("s_cmp_ge_u32 s3, 2")
                e("s_cbranch_scc1 oa_skip_%s" % tag)
            e("s_add_u32 s36, s34, %d" % (j * 4096))
            e("s_add_u32 m0, s36, %s" % slot_s)
            e("s_add_u32 s36, s35, %d" % (j * 32 * 8192))
            e("s_add_u32 s36, s36, %s" % koff_s)
            e("buffer_load_dwordx4 v4, s[16:19], s36 offen lds")
            if j == 4:
                a.label("oa_skip_%s" % tag)
        e("s_lshl_b32 s35, s3, 13")
        for j in range(2):
            e("s_add_u32 s36, s34, %d" % (18432 + j * 4096))
            e("s_add_u32 m0, s36, %s" % slot_s)
            e("s_lshl_b32 s37, %s, 9" % koff_s)
            e("s_add_u32 s36, s35, %d" % (j * 32 * 1024))
            e("s_add_u32 s36, s36, s37")
            e("buffer_load_dwordx4 v5, s[20:23], s36 offen lds")

    for p in range(NS - 1):
        e("s_mov_b32 s32, %d" % (p * SLOT))
        e("s_mov_b32 s33, %d" % (p * 128))
        dma("s32", "s33", "p%d" % p)
    e("s_mov_b32 s40, 0")
    e("s_mov_b32 s41, 0")
    e("s_mov_b32 s42, %d" % ((NS - 1) * SLOT))
    a.label("oproj_loop")
    e("s_waitcnt vmcnt(0)")
    e("s_barrier")
    e("s_cmp_ge_u32 s40, %d" % (64 - (NS - 1)))
    e("s_cbranch_scc1 oproj_noload")
    e("s_add_u32 s33, s40, %d" % (NS - 1))
    e("s_lshl_b32 s33, s33, 7")
    dma("s42", "s33", "loop")
    a.label("oproj_noload")
    e("v_add_u32 v10, s41, v6")
    e("v_add_u32 v11, s41, v7")
    for ks in range(2):
        for mt in range(5):
            e("ds_read_b128 %s, v10 offset:%d" % (vr(BF + mt * 4), mt * 16 * 128 + ks * 64))
        for nt in range(2):
            e("ds_read_b64_tr_b16 %s, v11 offset:%d" % (vr(AFR + nt * 4, 2), ks * 32 * 128 + nt * 32))
            e("ds_read_b64_tr_b16 %s, v11 offset:%d" % (vr(AFR + nt * 4 + 2, 2), ks * 32 * 128 + nt * 32 + 512))
        e("s_waitcnt lgkmcnt(0)")
        for mt in range(5):
            for nt in range(2):
                acc = ACC + (mt * 2 + nt) * 4
                e("v_mfma_f32_16x16x32_bf16 %s, %s, %s, %s" % (vr(acc), vr(AFR + nt * 4), vr(BF + mt * 4), vr(acc)))
    e("s_add_u32 s41, s41, %d" % SLOT)
    e("s_cmp_ge_u32 s41, %d" % (NS * SLOT))
    e("s_cselect_b32 s41, 0, s41")
    e("s_add_u32 s42, s42, %d" % SLOT)
    e("s_cmp_ge_u32 s42, %d" % (NS * SLOT))
    e("s_cselect_b32 s42, 0, s42")
    e("s_add_u32 s40, s40, 1")
    e("s_cmp_lt_u32 s40, 64")
    e("s_cbranch_scc1 oproj_loop")
    a.nop(10)
    for mt in range(5):
        if mt == 4:
            e("s_cmp_eq_u32 s28, 1")
            e("s_cbranch_scc1 oproj_end")
        e("s_mov_b32 s36, %d" % (mt * 16 * 1024))
        for nt in range(2):
            o = ACC + (mt * 2 + nt) * 4
            e("v_cvt_pk_bf16_f32 v%d, v%d, v%d" % (o, o, o + 1))
            e("v_cvt_pk_bf16_f32 v%d, v%d, v%d" % (o + 1, o + 2, o + 3))
            e("buffer_store_dwordx2 v[%d:%d], v8, s[24:27], s36 offen offset:%d" % (o, o + 1, nt * 32))
    a.label("oproj_end")
    e("s_waitcnt vmcnt(0)")
    a.label("oproj_done")
    e("s_endpgm")


def kd(name, vgpr, sgpr=96):
    acc = (vgpr + 3) // 4 * 4
    return """.p2align 6
.amdhsa_kernel %s
  .amdhsa_next_free_vgpr %d
  .amdhsa_next_free_sgpr %d
  .amdhsa_accum_offset %d
  .amdhsa_group_segment_fixed_size 0
  .amdhsa_kernarg_size 64
  .amdhsa_user_sgpr_count 2
  .amdhsa_user_sgpr_kernarg_segment_ptr 1
  .amdhsa_system_sgpr_workgroup_id_x 1
.end_amdhsa_kernel
""" % (name, vgpr, sgpr, acc)


def main():
    hdr = """; generated by gen.py
; @launch kernel=attn_kernel grid=(1024,1,1) block=(192,1,1) lds=77824
; @launch kernel=oproj_kernel grid=(256,1,1) block=(256,1,1) lds=106496
.amdgcn_target "amdgcn-amd-amdhsa--gfx950"
.text
"""
    a = Asm()
    gen_attn(a)
    gen_oproj(a)
    s = hdr + a.text()
    s += '.section .rodata,"a"\n'
    s += kd("attn_kernel", 256)
    s += kd("oproj_kernel", 96)
    open(OUT, "w").write(s)


if __name__ == "__main__":
    main()
```

```python
import sys

NAME = "standalone__mha_block_cached__near_ridge"
OUT = "cdna_kernels/%s.s" % NAME

SCALE_LOG2E = 0.08838834764831845 * 1.4426950408889634


def f32bits(x):
    import struct
    return struct.unpack("<I", struct.pack("<f", x))[0]


PROF = len(sys.argv) > 1 and sys.argv[1] == "prof"


def stamp(a, idx):
    if not PROF:
        return
    a.e("s_memtime s[60:61]")
    a.e("s_waitcnt lgkmcnt(0)")
    a.e("v_mov_b32 v254, s60")
    a.e("v_mov_b32 v255, s61")
    a.e("v_mov_b32 v253, 0")
    a.e("buffer_store_dwordx2 v[254:255], v253, s[64:67], 0 offen offset:%d" % (idx * 8))


class Asm:
    def __init__(self):
        self.L = []

    def e(self, s):
        self.L.append("    " + s)

    def label(self, s):
        self.L.append(s + ":")

    def c(self, s):
        self.L.append("    ; " + s)

    def nop(self, n):
        while n > 0:
            k = min(n, 16)
            self.e("s_nop %d" % (k - 1))
            n -= k

    def text(self):
        return "\n".join(self.L) + "\n"


def vr(b, n=4):
    return "v[%d:%d]" % (b, b + n - 1)


def stream(a, items, bufs, depth, nreads):
    n = len(items)
    for i in range(min(depth, n)):
        items[i][0](bufs[i % len(bufs)])
    for i in range(n):
        out = min(depth, n - i) - 1
        a.e("s_waitcnt lgkmcnt(%d)" % (out * nreads))
        items[i][1](bufs[i % len(bufs)])
        if i + depth < n:
            items[i + depth][0](bufs[(i + depth) % len(bufs)])


def gen_attn(a):
    kn = "attn_kernel"
    a.L.append(".globl %s" % kn)
    a.L.append(".p2align 8")
    a.L.append(".type %s,@function" % kn)
    a.label(kn)
    e = a.e
    e("s_cmp_ge_u32 s2, 1024")
    e("s_cbranch_scc1 attn_done")
    e("s_load_dwordx4 s[4:7], s[0:1], 0")
    e("s_load_dwordx4 s[8:11], s[0:1], 16")
    e("s_load_dwordx2 s[12:13], s[0:1], 56")
    e("v_and_b32 v1, 63, v0")
    e("v_lshrrev_b32 v9, 6, v0")
    e("v_and_b32 v2, 15, v1")
    e("v_lshrrev_b32 v3, 4, v1")
    e("s_nop 0")
    e("v_readfirstlane_b32 s3, v9")
    e("s_lshr_b32 s14, s2, 5")
    e("s_and_b32 s15, s2, 31")
    e("s_waitcnt lgkmcnt(0)")
    e("s_lshl_b32 s20, s2, 17")
    e("s_add_u32 s16, s6, s20")
    e("s_addc_u32 s17, s7, 0")
    e("s_and_b32 s17, s17, 0xffff")
    e("s_mov_b32 s18, 0x20000")
    e("s_mov_b32 s19, 0x20000")
    e("s_lshl_b32 s24, s2, 17")
    e("s_add_u32 s20, s8, s24")
    e("s_addc_u32 s21, s9, 0")
    e("s_and_b32 s21, s21, 0xffff")
    e("s_mov_b32 s22, 0x20000")
    e("s_mov_b32 s23, 0x20000")
    e("s_lshl_b32 s28, s15, 8")
    e("s_add_u32 s24, s10, s28")
    e("s_addc_u32 s25, s11, 0")
    e("s_and_b32 s25, s25, 0xffff")
    e("s_sub_u32 s26, 0x400000, s28")
    e("s_mov_b32 s27, 0x20000")
    e("s_mul_i32 s32, s14, 147456")
    e("s_add_u32 s28, s4, s32")
    e("s_addc_u32 s29, s5, 0")
    e("s_and_b32 s29, s29, 0xffff")
    e("s_mov_b32 s30, 147456")
    e("s_mov_b32 s31, 0x20000")
    e("s_mul_i32 s36, s14, 1179648")
    e("s_lshl_b32 s37, s15, 8")
    e("s_add_u32 s36, s36, s37")
    e("s_add_u32 s32, s12, s36")
    e("s_addc_u32 s33, s13, 0")
    e("s_and_b32 s33, s33, 0xffff")
    e("s_sub_u32 s34, 1179648, s37")
    e("s_mov_b32 s35, 0x20000")
    if PROF:
        e("s_load_dwordx2 s[64:65], s[0:1], 48")
        e("s_waitcnt lgkmcnt(0)")
        e("s_and_b32 s65, s65, 0xffff")
        e("s_mov_b32 s67, 0x20000")
        e("s_cmp_eq_u32 s2, 517")
        e("s_cselect_b32 s66, 256, 0")
        e("s_cmp_eq_u32 s3, 0")
        e("s_cselect_b32 s66, s66, 0")
    stamp(a, 0)
    e("s_lshl_b32 s36, s3, 10")
    e("s_sub_u32 s37, 2, s3")
    e("s_lshl_b32 s37, s37, 10")
    e("s_and_b32 s40, s3, 1")
    e("s_lshl_b32 s40, s40, 3")
    e("v_lshlrev_b32 v9, 1, v3")
    e("v_xor_b32 v9, v9, v2")
    e("v_xor_b32 v14, s40, v9")
    e("v_xor_b32 v15, 8, v14")
    e("v_lshlrev_b32 v9, 8, v3")
    e("v_lshl_add_u32 v4, v14, 4, v9")
    e("v_lshl_add_u32 v16, v15, 4, v9")
    e("v_lshlrev_b32 v9, 13, v3")
    e("v_lshl_add_u32 v5, v14, 4, v9")
    e("v_lshl_add_u32 v17, v15, 4, v9")
    e("v_mov_b32 v14, v16")
    e("v_mov_b32 v15, v17")
    e("v_and_b32 v9, 7, v2")
    e("v_lshlrev_b32 v9, 1, v9")
    e("v_xor_b32 v9, v9, v3")
    e("v_lshlrev_b32 v6, 8, v2")
    e("v_lshl_add_u32 v6, v9, 4, v6")
    e("v_lshrrev_b32 v9, 2, v2")
    e("v_lshl_add_u32 v9, v3, 3, v9")
    e("v_lshlrev_b32 v7, 8, v9")
    e("v_and_b32 v9, 7, v9")
    e("v_lshlrev_b32 v9, 1, v9")
    e("v_bfe_u32 v10, v2, 1, 1")
    e("v_xor_b32 v9, v9, v10")
    e("v_lshl_add_u32 v7, v9, 4, v7")
    e("v_and_b32 v9, 1, v2")
    e("v_lshl_add_u32 v7, v9, 3, v7")
    e("v_lshrrev_b32 v9, 2, v2")
    e("v_lshl_add_u32 v9, v3, 2, v9")
    e("v_lshlrev_b32 v8, 8, v9")
    e("v_and_b32 v9, 7, v9")
    e("v_lshlrev_b32 v9, 1, v9")
    e("v_bfe_u32 v10, v2, 1, 1")
    e("v_xor_b32 v9, v9, v10")
    e("v_lshl_add_u32 v8, v9, 4, v8")
    e("v_and_b32 v9, 1, v2")
    e("v_lshl_add_u32 v8, v9, 3, v8")
    e("v_add_u32 v8, 0x4000, v8")
    e("s_mul_i32 s38, s3, 48")
    e("v_add_u32 v10, s38, v2")
    e("v_lshlrev_b32 v10, 10, v10")
    e("v_lshl_add_u32 v10, v3, 4, v10")
    e("v_add_u32 v11, s38, v2")
    e("v_lshlrev_b32 v11, 13, v11")
    e("v_lshl_add_u32 v11, v3, 3, v11")
    e("s_lshl_b32 s39, s3, 12")
    e("s_add_u32 s39, s39, 0x10000")
    e("v_lshlrev_b32 v12, 8, v2")
    e("v_lshl_add_u32 v12, v3, 3, v12")
    e("v_add_u32 v12, s39, v12")
    e("v_lshlrev_b32 v13, 8, v2")
    e("v_lshl_add_u32 v13, v3, 4, v13")
    e("v_add_u32 v13, s39, v13")

    QF = 16
    OA = 64
    SA = 160
    PF = 208
    AF = 232
    MR, LR = 248, 251
    T0, T1 = 254, 255

    def dma_wq_slot(it, slot):
        a.c("DMA wq tile %d" % it)
        for j in range(6):
            c_last = (j == 5)
            if c_last:
                e("s_cmp_lg_u32 s3, 0")
                e("s_cbranch_scc1 wq_skip_%d" % it)
            e("s_add_u32 m0, s36, %d" % (slot * 16384 + 3072 * j))
            e("s_lshl_b32 s40, s3, 15")
            e("s_add_u32 s40, s40, %d" % ((it * 64 + 12 * j) * 8192))
            e("buffer_load_dwordx4 %s, s[24:27], s40 offen lds" % ("v15" if j & 1 else "v5"))
            if c_last:
                a.label("wq_skip_%d" % it)

    def dma_kv(slot_sreg, toff_sreg, tag):
        a.c("DMA K/V tile")
        for j in range(6):
            last = (j == 5)
            if last:
                e("s_cmp_lg_u32 s3, 0")
                e("s_cbranch_scc1 kskip_%s" % tag)
            e("s_add_u32 s40, s36, %d" % (3072 * j))
            e("s_add_u32 m0, s40, %s" % slot_sreg)
            e("s_add_u32 s40, s40, %s" % toff_sreg)
            e("buffer_load_dwordx4 %s, s[16:19], s40 offen lds" % ("v14" if j & 1 else "v4"))
            if last:
                a.label("kskip_%s" % tag)
        for j in range(6):
            last = (j == 5)
            if last:
                e("s_cmp_lg_u32 s3, 2")
                e("s_cbranch_scc1 vskip_%s" % tag)
            e("s_add_u32 s40, s37, %d" % (3072 * j))
            e("s_add_u32 m0, s40, %s" % slot_sreg)
            e("s_add_u32 m0, m0, 0x4000")
            e("s_add_u32 s40, s40, %s" % toff_sreg)
            e("buffer_load_dwordx4 %s, s[20:23], s40 offen lds" % ("v14" if j & 1 else "v4"))
            if last:
                a.label("vskip_%s" % tag)

    for i in range(96):
        e("v_mov_b32 v%d, 0" % (OA + i))

    XBUF = [SA, SA + 24, QF, QF + 24]

    def xload(i):
        xb = XBUF[i & 3]
        for qt in range(3):
            e("s_mov_b32 s41, %d" % (qt * 16 * 1024))
            for ks in range(2):
                e("buffer_load_dwordx4 %s, v10, s[28:31], s41 offen offset:%d" %
                  (vr(xb + (qt * 2 + ks) * 4), (i * 2 + ks) * 64))
    for p in range(3):
        dma_wq_slot(p, p)
        xload(p)
    for it in range(8):
        slot = it & 3
        XB = XBUF[it & 3]
        a.c("==== Q-proj iteration %d" % it)
        if it < 6:
            e("s_cmp_lg_u32 s3, 0")
            e("s_cbranch_scc1 qw_%d" % it)
            e("s_waitcnt vmcnt(24)")
            a.label("qw_%d" % it)
            e("s_waitcnt vmcnt(22)") if False else None
            e("s_cmp_eq_u32 s3, 0")
            e("s_cbranch_scc1 qx_%d" % it)
            e("s_waitcnt vmcnt(22)")
            a.label("qx_%d" % it)
        else:
            e("s_waitcnt vmcnt(0)")
        e("s_barrier")
        if it + 3 < 8:
            dma_wq_slot(it + 3, (it + 3) & 3)
            xload(it + 3)
        if it == 6:
            e("s_mov_b32 s42, 0")
            e("s_mov_b32 s43, 0")
            dma_kv("s42", "s43", "pre")
        items = []
        for ks in range(2):
            for dt in range(8):
                def iss(b, ks=ks, dt=dt):
                    off = slot * 16384 + ks * 32 * 256
                    e("v_xor_b32 v%d, %d, v7" % (T0, dt * 32))
                    e("v_xor_b32 v%d, %d, v7" % (T1, (dt * 32) ^ 128))
                    e("ds_read_b64_tr_b16 %s, v%d offset:%d" % (vr(b, 2), T0, off))
                    e("ds_read_b64_tr_b16 %s, v%d offset:%d" % (vr(b + 2, 2), T1, off + 1024))
                def con(b, ks=ks, dt=dt):
                    for qt in range(3):
                        acc = OA + (dt * 3 + qt) * 4
                        e("v_mfma_f32_16x16x32_bf16 %s, %s, %s, %s" %
                          (vr(acc), vr(b), vr(XB + (qt * 2 + ks) * 4), vr(acc)))
                items.append((iss, con))
        stream(a, items, [PF + 4 * i for i in range(10)], 6, 2)
    a.nop(10)
    for qt in range(3):
        for dt in range(8):
            acc = OA + (dt * 3 + qt) * 4
            e("v_cvt_pk_bf16_f32 v%d, v%d, v%d" % (T0, acc, acc + 1))
            e("v_cvt_pk_bf16_f32 v%d, v%d, v%d" % (T1, acc + 2, acc + 3))
            e("ds_write_b64 v12, v[%d:%d] offset:%d" % (T0, T1, dt * 32))
        e("s_waitcnt lgkmcnt(0)")
        for ks in range(4):
            e("ds_read_b128 %s, v13 offset:%d" % (vr(QF + (qt * 4 + ks) * 4), ks * 64))
        e("s_waitcnt lgkmcnt(0)")
    for i in range(96):
        e("v_mov_b32 v%d, 0" % (OA + i))
    for qt in range(3):
        e("v_mov_b32 v%d, 0xf149f2ca" % (MR + qt))
        e("v_mov_b32 v%d, 0" % (LR + qt))
    stamp(a, 5)
    e("s_mov_b32 s44, 0")
    e("s_mov_b32 s45, 0")
    e("s_mov_b32 s46, 0x%x" % f32bits(SCALE_LOG2E))
    a.label("attn_loop")
    e("s_waitcnt vmcnt(0)")
    e("s_barrier")
    e("s_cmp_ge_u32 s44, 7")
    e("s_cbranch_scc1 attn_noload")
    e("s_xor_b32 s42, s45, 0x8000")
    e("s_add_u32 s43, s44, 1")
    e("s_lshl_b32 s43, s43, 14")
    dma_kv("s42", "s43", "loop")
    a.label("attn_noload")
    items = []
    for kt in range(4):
        for ks in range(4):
            def iss(b, kt=kt, ks=ks):
                e("v_xor_b32 v%d, %d, v6" % (T0, ks * 64))
                e("ds_read_b128 %s, v%d offset:%d" % (vr(b), T0, kt * 4096))
            def con(b, kt=kt, ks=ks):
                for qt in range(3):
                    acc = SA + (kt * 3 + qt) * 4
                    e("v_mfma_f32_16x16x32_bf16 %s, %s, %s, %s" %
                      (vr(acc), vr(b), vr(QF + (qt * 4 + ks) * 4), vr(acc) if ks else "0"))
            items.append((iss, con))
    stream(a, items, [PF + 4 * i for i in range(10)], 6, 1)
    a.nop(10)
    for qt in range(3):
        S = [SA + (kt * 3 + qt) * 4 + r for kt in range(4) for r in range(4)]
        e("v_max3_f32 v%d, v%d, v%d, v%d" % (T0, S[0], S[1], S[2]))
        for i in range(3, 15, 2):
            e("v_max3_f32 v%d, v%d, v%d, v%d" % (T0, T0, S[i], S[i + 1]))
        e("v_max_f32 v%d, v%d, v%d" % (T0, T0, S[15]))
        e("v_mov_b32 v%d, v%d" % (T1, T0))
        a.nop(2)
        e("v_permlane16_swap_b32 v%d, v%d" % (T0, T1))
        a.nop(2)
        e("v_max_f32 v%d, v%d, v%d" % (T0, T0, T1))
        e("v_mov_b32 v%d, v%d" % (T1, T0))
        a.nop(2)
        e("v_permlane32_swap_b32 v%d, v%d" % (T0, T1))
        a.nop(2)
        e("v_max_f32 v%d, v%d, v%d" % (T0, T0, T1))
        e("v_max_f32 v%d, v%d, v%d" % (T0, T0, MR + qt))
        e("v_sub_f32 v%d, v%d, v%d" % (T1, MR + qt, T0))
        e("v_mul_f32 v%d, s46, v%d" % (T1, T1))
        e("v_exp_f32 v%d, v%d" % (T1, T1))
        e("v_mov_b32 v%d, v%d" % (MR + qt, T0))
        e("v_mul_f32 v%d, s46, v%d" % (T0, T0))
        e("v_sub_f32 v%d, 0, v%d" % (T0, T0))
        for s in S:
            e("v_fma_f32 v%d, v%d, s46, v%d" % (s, s, T0))
        for s in S:
            e("v_exp_f32 v%d, v%d" % (s, s))
        e("v_mul_f32 v%d, v%d, v%d" % (LR + qt, LR + qt, T1))
        for s in S:
            e("v_add_f32 v%d, v%d, v%d" % (LR + qt, LR + qt, s))
        for dt in range(8):
            o = OA + (dt * 3 + qt) * 4
            for r in range(4):
                e("v_mul_f32 v%d, v%d, v%d" % (o + r, o + r, T1))
        for kb in range(2):
            p = PF + (kb * 3 + qt) * 4
            for h in range(2):
                s0 = SA + ((kb * 2 + h) * 3 + qt) * 4
                e("v_cvt_pk_bf16_f32 v%d, v%d, v%d" % (p + 2 * h, s0, s0 + 1))
                e("v_cvt_pk_bf16_f32 v%d, v%d, v%d" % (p + 2 * h + 1, s0 + 2, s0 + 3))
    a.nop(4)
    items = []
    for kb in range(2):
        for dt in range(8):
            def iss(b, kb=kb, dt=dt):
                e("v_xor_b32 v%d, %d, v8" % (T0, dt * 32))
                e("ds_read_b64_tr_b16 %s, v%d offset:%d" % (vr(b, 2), T0, kb * 8192))
                e("ds_read_b64_tr_b16 %s, v%d offset:%d" % (vr(b + 2, 2), T0, kb * 8192 + 4096))
            def con(b, kb=kb, dt=dt):
                for qt in range(3):
                    acc = OA + (dt * 3 + qt) * 4
                    e("v_mfma_f32_16x16x32_bf16 %s, %s, %s, %s" %
                      (vr(acc), vr(b), vr(PF + (kb * 3 + qt) * 4), vr(acc)))
            items.append((iss, con))
    stream(a, items, [SA + 4 * i for i in range(12)], 8, 2)
    e("s_xor_b32 s45, s45, 0x8000")
    e("v_xor_b32 v6, 0x8000, v6")
    e("v_xor_b32 v8, 0x8000, v8")
    e("s_add_u32 s44, s44, 1")
    e("s_cmp_lt_u32 s44, 8")
    a.nop(8)
    e("s_cbranch_scc1 attn_loop")
    a.nop(8)
    stamp(a, 6)
    for qt in range(3):
        e("v_mov_b32 v%d, v%d" % (T0, LR + qt))
        e("v_mov_b32 v%d, v%d" % (T1, T0))
        a.nop(2)
        e("v_permlane16_swap_b32 v%d, v%d" % (T0, T1))
        a.nop(2)
        e("v_add_f32 v%d, v%d, v%d" % (T0, T0, T1))
        e("v_mov_b32 v%d, v%d" % (T1, T0))
        a.nop(2)
        e("v_permlane32_swap_b32 v%d, v%d" % (T0, T1))
        a.nop(2)
        e("v_add_f32 v%d, v%d, v%d" % (T0, T0, T1))
        e("v_rcp_f32 v%d, v%d" % (T0, T0))
        e("s_mov_b32 s41, %d" % (qt * 16 * 8192))
        a.nop(1)
        for dt in range(8):
            o = OA + (dt * 3 + qt) * 4
            for r in range(4):
                e("v_mul_f32 v%d, v%d, v%d" % (o + r, o + r, T0))
            e("v_cvt_pk_bf16_f32 v%d, v%d, v%d" % (o, o, o + 1))
            e("v_cvt_pk_bf16_f32 v%d, v%d, v%d" % (o + 1, o + 2, o + 3))
            e("buffer_store_dwordx2 v[%d:%d], v11, s[32:35], s41 offen offset:%d" % (o, o + 1, dt * 32))
    e("s_waitcnt vmcnt(0)")
    stamp(a, 7)
    a.label("attn_done")
    e("s_endpgm")


def gen_oproj(a):
    kn = "oproj_kernel"
    a.L.append(".globl %s" % kn)
    a.L.append(".p2align 8")
    a.L.append(".type %s,@function" % kn)
    a.label(kn)
    e = a.e
    e("s_cmp_ge_u32 s2, 256")
    e("s_cbranch_scc1 oproj_done")
    e("s_load_dwordx4 s[4:7], s[0:1], 32")
    e("s_load_dwordx2 s[8:9], s[0:1], 56")
    e("v_and_b32 v1, 63, v0")
    e("v_lshrrev_b32 v9, 6, v0")
    e("v_and_b32 v2, 15, v1")
    e("v_lshrrev_b32 v3, 4, v1")
    e("s_nop 0")
    e("v_readfirstlane_b32 s3, v9")
    e("s_and_b32 s10, s2, 7")
    e("s_lshr_b32 s11, s2, 3")
    e("s_lshr_b32 s12, s11, 3")
    e("s_lshl_b32 s13, s10, 2")
    e("s_add_u32 s12, s12, s13")
    e("s_and_b32 s13, s11, 7")
    e("s_waitcnt lgkmcnt(0)")
    e("s_mul_i32 s14, s12, 1179648")
    e("s_add_u32 s16, s8, s14")
    e("s_addc_u32 s17, s9, 0")
    e("s_and_b32 s17, s17, 0xffff")
    e("s_mov_b32 s18, 1179648")
    e("s_mov_b32 s19, 0x20000")
    e("s_lshl_b32 s14, s13, 7")
    e("s_add_u32 s20, s4, s14")
    e("s_addc_u32 s21, s5, 0")
    e("s_and_b32 s21, s21, 0xffff")
    e("s_sub_u32 s22, 0x400000, s14")
    e("s_mov_b32 s23, 0x20000")
    e("s_mul_i32 s15, s12, 147456")
    e("s_add_u32 s15, s15, s14")
    e("s_add_u32 s24, s6, s15")
    e("s_addc_u32 s25, s7, 0")
    e("s_and_b32 s25, s25, 0xffff")
    e("s_sub_u32 s26, 147456, s14")
    e("s_mov_b32 s27, 0x20000")
    e("v_lshrrev_b32 v9, 3, v1")
    e("v_and_b32 v10, 7, v1")
    e("s_and_b32 s30, s3, 1")
    e("s_lshl_b32 s31, s30, 2")
    e("v_or_b32 v11, s31, v3")
    e("v_xor_b32 v11, v11, v10")
    e("v_lshlrev_b32 v4, 13, v9")
    e("v_lshl_add_u32 v4, v11, 4, v4")
    e("v_bfe_u32 v11, v9, 1, 1")
    e("s_lshl_b32 s31, s30, 1")
    e("v_or_b32 v11, s31, v11")
    e("v_lshlrev_b32 v11, 1, v11")
    e("v_xor_b32 v11, v11, v10")
    e("v_lshlrev_b32 v5, 10, v9")
    e("v_lshl_add_u32 v5, v11, 4, v5")
    e("s_lshr_b32 s28, s3, 1")
    e("s_and_b32 s29, s3, 1")
    e("s_mul_i32 s30, s28, 80*128")
    e("v_lshrrev_b32 v9, 1, v2")
    e("v_xor_b32 v9, v9, v3")
    e("v_lshlrev_b32 v6, 7, v2")
    e("v_lshl_add_u32 v6, v9, 4, v6")
    e("v_add_u32 v6, s30, v6")
    e("v_lshrrev_b32 v9, 2, v2")
    e("v_lshl_add_u32 v9, v3, 3, v9")
    e("v_lshlrev_b32 v7, 7, v9")
    e("v_bfe_u32 v10, v2, 3, 1")
    e("v_and_b32 v11, 1, v3")
    e("v_lshl_add_u32 v10, v11, 1, v10")
    e("v_lshlrev_b32 v10, 1, v10")
    e("v_bfe_u32 v11, v2, 1, 1")
    e("v_xor_b32 v10, v10, v11")
    e("s_lshl_b32 s31, s29, 2")
    e("v_xor_b32 v10, s31, v10")
    e("v_lshl_add_u32 v7, v10, 4, v7")
    e("v_and_b32 v9, 1, v2")
    e("v_lshl_add_u32 v7, v9, 3, v7")
    e("v_add_u32 v7, 18432, v7")
    e("s_mul_i32 s30, s28, 80")
    e("v_add_u32 v8, s30, v2")
    e("v_lshlrev_b32 v8, 10, v8")
    e("v_lshl_add_u32 v8, v3, 3, v8")
    e("s_lshl_b32 s30, s29, 6")
    e("v_add_u32 v8, s30, v8")

    ACC = 16
    BF = 56
    AFR = 96
    SLOT = 26624
    NS = 6

    for i in range(40):
        e("v_mov_b32 v%d, 0" % (ACC + i))

    def dma(slot_s, koff_s, tag):
        e("s_lshl_b32 s34, s3, 10")
        e("s_lshl_b32 s35, s3, 16")
        for j in range(5):
            if j == 4:
                e("s_cmp_ge_u32 s3, 2")
                e("s_cbranch_scc1 oa_skip_%s" % tag)
            e("s_add_u32 s36, s34, %d" % (j * 4096))
            e("s_add_u32 m0, s36, %s" % slot_s)
            e("s_add_u32 s36, s35, %d" % (j * 32 * 8192))
            e("s_add_u32 s36, s36, %s" % koff_s)
            e("buffer_load_dwordx4 v4, s[16:19], s36 offen lds")
            if j == 4:
                a.label("oa_skip_%s" % tag)
        e("s_lshl_b32 s35, s3, 13")
        for j in range(2):
            e("s_add_u32 s36, s34, %d" % (18432 + j * 4096))
            e("s_add_u32 m0, s36, %s" % slot_s)
            e("s_lshl_b32 s37, %s, 9" % koff_s)
            e("s_add_u32 s36, s35, %d" % (j * 32 * 1024))
            e("s_add_u32 s36, s36, s37")
            e("buffer_load_dwordx4 v5, s[20:23], s36 offen lds")

    for p in range(NS - 1):
        e("s_mov_b32 s32, %d" % (p * SLOT))
        e("s_mov_b32 s33, %d" % (p * 128))
        dma("s32", "s33", "p%d" % p)
    e("s_mov_b32 s40, 0")
    e("s_mov_b32 s41, 0")
    e("s_mov_b32 s42, %d" % ((NS - 1) * SLOT))
    a.label("oproj_loop")
    e("s_cmp_ge_u32 s40, 60")
    e("s_cbranch_scc1 oproj_w0")
    e("s_cmp_ge_u32 s3, 2")
    e("s_cbranch_scc1 oproj_w12")
    e("s_waitcnt vmcnt(28)")
    e("s_branch oproj_wd")
    a.label("oproj_w12")
    e("s_waitcnt vmcnt(24)")
    e("s_branch oproj_wd")
    a.label("oproj_w0")
    e("s_waitcnt vmcnt(0)")
    a.label("oproj_wd")
    e("s_barrier")
    e("s_cmp_ge_u32 s40, %d" % (64 - (NS - 1)))
    e("s_cbranch_scc1 oproj_noload")
    e("s_add_u32 s33, s40, %d" % (NS - 1))
    e("s_lshl_b32 s33, s33, 7")
    dma("s42", "s33", "loop")
    a.label("oproj_noload")
    e("v_add_u32 v10, s41, v6")
    e("v_add_u32 v11, s41, v7")
    e("v_xor_b32 v12, 64, v10")
    e("v_xor_b32 v13, 32, v11")
    for ks in range(2):
        for nt in range(2):
            e("ds_read_b64_tr_b16 %s, v%d offset:%d" % (vr(AFR + (ks * 2 + nt) * 4, 2), 13 if nt else 11, ks * 4096))
            e("ds_read_b64_tr_b16 %s, v%d offset:%d" % (vr(AFR + (ks * 2 + nt) * 4 + 2, 2), 13 if nt else 11, ks * 4096 + 512))
        for mt in range(5):
            e("ds_read_b128 %s, v%d offset:%d" % (vr(BF + (ks * 5 + mt) * 4), 12 if ks else 10, mt * 2048))
    for ks in range(2 if not (len(sys.argv) > 1 and sys.argv[1] == "nomfma") else 0):
        for mt in range(5):
            e("s_waitcnt lgkmcnt(%d)" % ((1 - ks) * 9 + 4 - mt))
            for nt in range(2):
                acc = ACC + (mt * 2 + nt) * 4
                e("v_mfma_f32_16x16x32_bf16 %s, %s, %s, %s" % (vr(acc), vr(AFR + (ks * 2 + nt) * 4), vr(BF + (ks * 5 + mt) * 4), vr(acc)))
    e("s_add_u32 s41, s41, %d" % SLOT)
    e("s_cmp_ge_u32 s41, %d" % (NS * SLOT))
    e("s_cselect_b32 s41, 0, s41")
    e("s_add_u32 s42, s42, %d" % SLOT)
    e("s_cmp_ge_u32 s42, %d" % (NS * SLOT))
    e("s_cselect_b32 s42, 0, s42")
    e("s_add_u32 s40, s40, 1")
    e("s_cmp_lt_u32 s40, 64")
    e("s_cbranch_scc1 oproj_loop")
    a.nop(10)
    for mt in range(5):
        if mt == 4:
            e("s_cmp_eq_u32 s28, 1")
            e("s_cbranch_scc1 oproj_end")
        e("s_mov_b32 s36, %d" % (mt * 16 * 1024))
        for nt in range(2):
            o = ACC + (mt * 2 + nt) * 4
            e("v_cvt_pk_bf16_f32 v%d, v%d, v%d" % (o, o, o + 1))
            e("v_cvt_pk_bf16_f32 v%d, v%d, v%d" % (o + 1, o + 2, o + 3))
            e("buffer_store_dwordx2 v[%d:%d], v8, s[24:27], s36 offen offset:%d" % (o, o + 1, nt * 32))
    a.label("oproj_end")
    e("s_waitcnt vmcnt(0)")
    a.label("oproj_done")
    e("s_endpgm")


def kd(name, vgpr, sgpr=96):
    acc = (vgpr + 3) // 4 * 4
    return """.p2align 6
.amdhsa_kernel %s
  .amdhsa_next_free_vgpr %d
  .amdhsa_next_free_sgpr %d
  .amdhsa_accum_offset %d
  .amdhsa_group_segment_fixed_size 0
  .amdhsa_kernarg_size 64
  .amdhsa_user_sgpr_count 2
  .amdhsa_user_sgpr_kernarg_segment_ptr 1
  .amdhsa_system_sgpr_workgroup_id_x 1
.end_amdhsa_kernel
""" % (name, vgpr, sgpr, acc)


def main():
    hdr = """; generated by gen.py
; @launch kernel=attn_kernel grid=(1024,1,1) block=(192,1,1) lds=77824
; @launch kernel=oproj_kernel grid=(256,1,1) block=(256,1,1) lds=159744
.amdgcn_target "amdgcn-amd-amdhsa--gfx950"
.text
"""
    a = Asm()
    gen_attn(a)
    gen_oproj(a)
    s = hdr + a.text()
    s += '.section .rodata,"a"\n'
    s += kd("attn_kernel", 256)
    s += kd("oproj_kernel", 112)
    open(OUT, "w").write(s)


if __name__ == "__main__":
    main()
```
